```python
import torch

def _softmax(x, axis=-1):
    return torch.softmax(x, dim=axis)
def _gelu(x):
    return torch.nn.functional.gelu(x, approximate="tanh")
def _silu(x):
    return torch.nn.functional.silu(x)
def _sigmoid(x):
    return torch.sigmoid(x)
def _layernorm(x, axis=-1, eps=1e-5):
    m = x.mean(dim=axis, keepdim=True)
    v = x.var(dim=axis, keepdim=True, unbiased=False)
    return (x - m) / torch.sqrt(v + eps)
def _scatter_add(tgt, idx, src, axis=0):
    return tgt.clone().index_add_(axis, idx, src)
def _segment_sum(src, seg, n):
    out = torch.zeros((n,) + src.shape[1:], dtype=src.dtype)
    return out.index_add_(0, seg, src)
def _pad(x, pw):
    flat = tuple(v for pair in reversed(pw) for v in pair)
    return torch.nn.functional.pad(x, flat)

kernel_name = 'gated_mix__grouped_kv_mqa__glu_gated_geglu__prompt'

def setup_inputs():

    _w = (lambda a: (lambda t: t.to(torch.bfloat16) if t.is_floating_point() else t)(torch.as_tensor(a)))
    def _A_setup():
        B, S, D, H = 1, 2048, 512, 32
        Dh = D // H
        return {
            "x": _w((lambda *s: torch.randn(*s, dtype=torch.bfloat16) * 0.05)(B, S, D)),
            "wq": _w((lambda *s: torch.randn(*s, dtype=torch.bfloat16) * 0.8)(D, H * Dh)),
            "wk": _w((lambda *s: torch.randn(*s, dtype=torch.bfloat16) * 0.8)(D, Dh)),
            "wv": _w((lambda *s: torch.randn(*s, dtype=torch.bfloat16) * 0.05)(D, Dh)),
            "wo": _w((lambda *s: torch.randn(*s, dtype=torch.bfloat16) * 0.05)(H * Dh, D)),
        }
    _A_in = _A_setup()

    def _B_setup():
        B, S, Dm, Df = 1, 2048, 512, 1792
        return {
            "x": _w((lambda *s: torch.randn(*s, dtype=torch.bfloat16) * 0.05)(B, S, Dm)),
            "w_gate": _w((lambda *s: torch.randn(*s, dtype=torch.bfloat16) * 0.8)(Dm, Df) * (Dm ** -0.5)),
            "w_up": _w((lambda *s: torch.randn(*s, dtype=torch.bfloat16) * 0.8)(Dm, Df) * (Dm ** -0.5)),
            "w_down": _w((lambda *s: torch.randn(*s, dtype=torch.bfloat16) * 0.8)(Df, Dm) * (Df ** -0.5)),
        }
    _B_in = _B_setup()

    return {
        "A_x": _A_in["x"],
        "A_wq": _A_in["wq"],
        "A_wk": _A_in["wk"],
        "A_wv": _A_in["wv"],
        "A_wo": _A_in["wo"],
        "B_x": _B_in["x"],
        "B_w_gate": _B_in["w_gate"],
        "B_w_up": _B_in["w_up"],
        "B_w_down": _B_in["w_down"],
        "gate_w": _w((lambda *s: torch.randn(*s, dtype=torch.bfloat16) * 0.05)(512) * 16.0),
    }

def reference(A_x, A_wq, A_wk, A_wv, A_wo, B_x, B_w_gate, B_w_up, B_w_down, gate_w):
    def _A_ref(x, wq, wk, wv, wo):
        B, S, D = x.shape
        H = 32
        Dh = D // H
        q = (lambda x, *d: x.permute(*d))((x @ wq).reshape(B, S, H, Dh), 0, 2, 1, 3)
        k = x @ wk
        v = x @ wv
        scores = torch.einsum("bhqd,bkd->bhqk", q, k) * (Dh ** -0.5)
        p = _softmax(scores, axis=-1)
        o = torch.einsum("bhqk,bkd->bhqd", p, v)
        return (lambda x, *d: x.permute(*d))(o, 0, 2, 1, 3).reshape(B, S, H * Dh) @ wo

    def _B_ref(x, w_gate, w_up, w_down):
        g = torch.einsum("bsd,df->bsf", x, w_gate)
        u = torch.einsum("bsd,df->bsf", x, w_up)
        h = _gelu(g) * u
        return torch.einsum("bsf,fd->bsd", h, w_down)

    x = A_x
    g = _sigmoid((x * gate_w).sum(-1, keepdims=True))
    a = _A_ref(x, A_wq, A_wk, A_wv, A_wo)
    b = _B_ref(x, B_w_gate, B_w_up, B_w_down)
    return g * a + (1 - g) * b
```

```python
import re

def regs_of(tok):
    tok = tok.strip()
    tok = tok.lstrip('-')
    m = re.fullmatch(r'abs\((.*)\)', tok)
    if m: tok = m.group(1)
    m = re.fullmatch(r'\|(.*)\|', tok)
    if m: tok = m.group(1)
    m = re.fullmatch(r'([vs])(\d+)', tok)
    if m: return [(m.group(1), int(m.group(2)))]
    m = re.fullmatch(r'([vs])\[(\d+):(\d+)\]', tok)
    if m: return [(m.group(1), i) for i in range(int(m.group(2)), int(m.group(3)) + 1)]
    if tok == 'vcc': return [('s', 'vcc')]
    if tok == 'exec': return [('s', 'exec')]
    if tok == 'm0': return [('s', 'm0')]
    return []

TRANS = ('v_exp_f32', 'v_log_f32', 'v_rcp_f32', 'v_rsq_f32', 'v_sqrt_f32', 'v_sin_f32', 'v_cos_f32', 'v_exp_f16')

class Ins:
    def __init__(self, text):
        self.text = text
        t = text.split(';')[0].strip()
        self.label = t.endswith(':')
        self.op = t.split()[0] if t and not self.label else ''
        self.empty = (not t) or self.label or t.startswith('.')
        self.dst = []; self.src = []
        if self.empty: return
        rest = t[len(self.op):].strip()
        ops = [o.strip() for o in re.split(r',(?![^\[]*\])', rest)] if rest else []
        ops2 = []
        for o in ops:
            ops2.append(o.split()[0] if o else o)
        self.mods = rest
        op = self.op
        R = [regs_of(o) for o in ops2]
        self.R = R
        self.is_mfma = op.startswith('v_mfma') or op.startswith('v_smfmac')
        self.is_valu = op.startswith('v_') and not self.is_mfma
        self.is_trans = op.replace('_e32', '').replace('_e64', '') in TRANS
        self.is_ds = op.startswith('ds_')
        self.is_vmem = op.startswith('buffer_') or op.startswith('global_')
        self.is_smem = op.startswith('s_load') or op.startswith('s_memtime') or op.startswith('s_memrealtime')
        self.is_lds_dma = self.is_vmem and re.search(r'\blds\b', rest) is not None
        self.passes = 0
        if self.is_mfma:
            self.passes = 8 if '32x32' in op else 4
            self.dst = R[0]
            self.srcA = R[1]; self.srcB = R[2]
            if op.startswith('v_smfmac'):
                self.srcC = R[0]; self.src = R[0] + R[1] + R[2] + R[3]
            else:
                self.srcC = R[3]; self.src = R[1] + R[2] + R[3]
        elif self.is_valu:
            if op.startswith('v_cmp'):
                self.dst = R[0]; self.src = sum(R[1:], [])
            elif op.startswith('v_permlane') and 'swap' in op:
                self.dst = R[0] + R[1]; self.src = R[0] + R[1]
            elif op.startswith('v_fmac') or op.startswith('v_pk_fmac') or op.startswith('v_dot2c'):
                self.dst = R[0]; self.src = sum(R, [])
            elif op.startswith('v_add_co') or op.startswith('v_addc_co') or op.startswith('v_sub_co'):
                self.dst = R[0] + R[1]; self.src = sum(R[2:], [])
            elif op.startswith('v_cndmask'):
                self.dst = R[0]; self.src = sum(R[1:], [])
                if len(R) < 4: self.src += [('s', 'vcc')]
            else:
                self.dst = R[0]; self.src = sum(R[1:], [])
            if 'dpp' in rest or 'row_' in rest or 'quad_perm' in rest:
                self.dpp = True
                self.src += self.dst
            else: self.dpp = False
        elif self.is_ds:
            if op.startswith('ds_read') or op.startswith('ds_bpermute') or op.startswith('ds_swizzle'):
                self.dst = R[0]; self.src = sum(R[1:], [])
            else:
                self.src = sum(R, [])
        elif self.is_vmem:
            if 'load' in op and not self.is_lds_dma:
                self.dst = R[0]; self.src = sum(R[1:], [])
            elif self.is_lds_dma:
                self.src = sum(R, []) + [('s', 'm0')]
            else:
                self.src = sum(R, [])
                self.data = R[0] if op.startswith('buffer_') else R[1]
        elif op.startswith('s_'):
            if op.startswith('s_cmp') or op.startswith('s_cbranch') or op.startswith('s_branch') or op in ('s_waitcnt', 's_nop', 's_barrier', 's_endpgm', 's_sleep', 's_setprio'):
                self.src = sum(R, [])
                if op.startswith('s_cbranch_vcc'): self.src = [('s', 'vcc')]
            elif op.endswith('saveexec_b64'):
                self.dst = R[0] + [('s', 'exec')]; self.src = sum(R[1:], []) + [('s', 'exec')]
            else:
                self.dst = R[0]; self.src = sum(R[1:], [])
    def states(self):
        if self.empty: return 0
        if self.op == 's_nop':
            return int(self.text.split(';')[0].split()[1], 0) + 1
        return 1

def check_hazards(trace, name=''):
    I = [Ins(t) for t in trace]
    I = [x for x in I if not x.empty]
    errs = []
    n = len(I)
    for i, p in enumerate(I):
        st = 0
        for j in range(i + 1, n):
            c = I[j]
            need = 0
            pd = set(p.dst); cs = set(c.src); cd = set(c.dst)
            vd = {r for r in pd if r[0] == 'v'}
            sd = {r for r in pd if r[0] == 's'}
            if p.is_valu:
                if c.is_mfma and vd & cs: need = max(need, 2)
                if c.is_valu and c.op.startswith('v_read') and vd & cs: need = max(need, 1)
                if c.is_valu and c.op.startswith('v_permlane') and vd & cs: need = max(need, 2)
                if c.is_valu and getattr(c, 'dpp', False) and vd & cs: need = max(need, 2)
                if p.is_trans and c.is_valu and not c.is_trans and vd & cs: need = max(need, 1)
                if sd and c.is_valu and sd & cs: need = max(need, 2)
                if sd and c.is_vmem and sd & cs: need = max(need, 5)
                if sd and c.op.startswith('s_') and sd & cs: need = max(need, 1)
                if ('s', 'exec') in sd and (c.is_mfma or c.is_valu): need = max(need, 5)
            if p.is_mfma:
                P = p.passes
                if c.is_mfma:
                    if set(c.srcA + c.srcB) & vd: need = max(need, {4: 8, 8: 12}[P])
                    cc = set(c.srcC)
                    if cc & vd and not (cc == vd and c.passes == P): need = max(need, {4: 6, 8: 10}[P])
                    if c.op.startswith('v_smfmac') and set(c.R[3]) & vd: need = max(need, {4: 8, 8: 12}[P])
                elif (c.is_valu or c.is_ds or c.is_vmem) and vd & (cs | cd): need = max(need, {4: 8, 8: 12}[P])
                if c.is_valu and set(p.srcC) & cd: need = max(need, {4: 3, 8: 7}[P])
            if p.is_vmem and not p.is_lds_dma and 'store' in p.op and ('x3' in p.op or 'x4' in p.op):
                if set(p.data) & cd: need = max(need, 2)
            if p.op.startswith('s_') and ('s', 'm0') in pd and c.is_lds_dma: need = max(need, 1)
            if need > st:
                errs.append(f"{name}: hazard need {need} have {st}: [{p.text.strip()}] -> [{c.text.strip()}]")
            st += c.states()
            if st >= 20: break
    return errs

def check_waits(trace, name=''):
    errs = []
    vm = []
    lg = []
    for t in trace:
        c = Ins(t)
        if c.empty: continue
        if c.op == 's_waitcnt':
            m = re.search(r'vmcnt\((\d+)\)', t)
            if m:
                k = int(m.group(1))
                while len(vm) > k: vm.pop(0)
            m = re.search(r'lgkmcnt\((\d+)\)', t)
            if m:
                k = int(m.group(1))
                if any(x[1] for x in lg) and k != 0:
                    errs.append(f"{name}: counted lgkmcnt with SMEM outstanding: {t}")
                while len(lg) > k: lg.pop(0)
            continue
        touched = set(c.src) | set(c.dst)
        for d in vm:
            if d & touched: errs.append(f"{name}: vm pending reg touched: {t.strip()} regs {sorted(d & touched)[:4]}")
        for d, _ in lg:
            if d & touched: errs.append(f"{name}: lgkm pending reg touched: {t.strip()} regs {sorted(d & touched, key=str)[:4]}")
        if c.is_vmem:
            vm.append(set(c.dst))
            if len(vm) > 63: errs.append(f"{name}: vmcnt overflow")
        if c.is_ds:
            lg.append((set(c.dst), False))
            if len(lg) > 15: errs.append(f"{name}: lgkmcnt overflow at {t.strip()}")
        if c.is_smem: lg.append((set(c.dst), True))
    return errs

def interleave(a, b, start=0, end=None):
    if not b: return list(a)
    if end is None: end = len(a)
    out = list(a[:start])
    seg = a[start:end]
    step = len(seg) / len(b)
    j = 0
    for i, x in enumerate(seg):
        while j < len(b) and j * step <= i:
            out.append(b[j]); j += 1
        out.append(x)
    out += b[j:]
    out += a[end:]
    return out
```

```python
import sys, math
from asmlib import *

NAME = "gated_mix__grouped_kv_mqa__glu_gated_geglu__prompt"
DEBUG_TS = ('--ts' in sys.argv)
FORCE_SLOW = ('--slow' in sys.argv)
MAPPING = 'B'
OUTFILE = None
for a in sys.argv:
    if a.startswith('--map='): MAPPING = a[6:]
    if a.startswith('--out='): OUTFILE = a[6:]

SLOT = 34048
S = [i * SLOT for i in range(4)]
MISC = 4 * SLOT
QH_OFF = MISC
QN_OFF = MISC + 4096
KN_OFF = MISC + 5120
LDS_TOTAL = MISC + 5248
KVR = S[0]
WDR = S[1]
WOB = S[2]
XCH = S[3]
WS_KV = 0
WS_GATE = 131072
WS_EPOCH = 139264
WS_FKV = 0x24000
WS_FH = 0x28000
WS_FO = 0x30000
WS_TS = 0x60000
WS_ACT = 0x100000
WS_SIZE = WS_ACT + 64 * 144 * 1024
rX, rWQ, rKV, rWO, rWG, rWU, rWD, rGW, rOUT, rWS = [f"s[{4+4*i}:{7+4*i}]" for i in range(10)]
sW, sH, sRG, sR, sC, sNonce = 's44', 's45', 's46', 's47', 's48', 's49'
sXb8, sXl8, sXb4, sXl4 = 's50', 's51', 's52', 's53'
sFblk, sFhalf = 's54', 's55'
sWq2, sWg2, sWg1, sL2, sL1 = 's56', 's57', 's58', 's59', 's62'
sVm = 's[60:61]'
sStage, sKVo, sWdo, sHo, sRing, sAct, sRt = 's63', 's64', 's65', 's66', 's67', 's68', 's69'
sRingW = 's70'
sCu = 's71'
sT0, sT1, sT2, sT3 = 's98', 's99', 's100', 's101'
sC1, sC2 = 's50', 's51'
vLane, vLin, vX4, vW64g, vW64, vW32g = 'v2', 'v3', 'v4', 'v5', 'v6', 'v7'
vXrd, vWrd, vWrdA, vT0, vT1, vT2, vT3 = 'v8', 'v9', 'v10', 'v11', 'v12', 'v13', 'v14'
vIdx = 'v15'
ACC = [16, 32]
WF = 48
GT = 64
Q = 80
vQn = 'v84'
vM = 'v85'
vG = 'v86'
vKc, vKn, vWc, vWn = 'v87', 'v1', 'v8', 'v9'
vWdb = 'v10'
XF = 128
SB = [16, 32]
O = 48
KB = [64, 68]
VB = [88, 96]
ACCB = 104
WDF = [120, 124]
HB = 128
OF = 160
ACCA = 224

SPIN = 200000
LOG2E = 1.4426950408889634
def f2u(x):
    import struct
    return struct.unpack('<I', struct.pack('<f', x))[0]
QSCALE = f2u(0.25 * LOG2E)
C1 = -2.0 * math.sqrt(2.0 / math.pi) * LOG2E
C2 = C1 * 0.044715
THR2 = f2u(48.0 * 48.0)

def vr(a, n): return f"v[{a}:{a+n-1}]"

class VM:
    def __init__(self): self.f = {0: [], 1: []}
    def issue(self, tag, roles=(0, 1), n=1):
        for r in roles: self.f[r] += [tag] * n
    def wait(self, tag):
        N = 63
        for r in self.f:
            q = self.f[r]
            if tag in q:
                last = len(q) - 1 - q[::-1].index(tag)
                N = min(N, len(q) - 1 - last)
        assert N < 63, tag
        for r in self.f:
            self.f[r] = self.f[r][max(0, len(self.f[r]) - N):]
        return f"s_waitcnt vmcnt({N})"
vm = VM()

def dma(srd, voff, sbase, gconst, lbase, lconst, mods=""):
    L = []
    if lbase is None: L.append(f"s_mov_b32 m0, {lconst}")
    else: L.append(f"s_add_u32 m0, {lbase}, {lconst}")
    if sbase is None: L.append(f"s_mov_b32 {sT0}, {gconst}")
    else: L.append(f"s_add_u32 {sT0}, {sbase}, {gconst}")
    L.append(f"buffer_load_dwordx4 {voff}, {srd}, {sT0} offen{mods} lds")
    return L

ts_tags = []
def ts(tag):
    if not DEBUG_TS: return []
    i = len(ts_tags); ts_tags.append(tag)
    assert i < 22
    return ["s_waitcnt lgkmcnt(0)", f"s_memtime s[94:95]", "s_waitcnt lgkmcnt(0)", f"s_mov_b32 s{72+i}, s94"]

def entry():
    L = [f"s_cmp_ge_u32 s2, 256", "s_cbranch_scc1 L_end",
         "s_load_dwordx16 s[72:87], s[0:1], 0", "s_load_dwordx8 s[88:95], s[0:1], 64", "s_load_dwordx2 s[96:97], s[0:1], 96"]
    if DEBUG_TS: L += ["s_memtime s[0:1]"]
    L += ["s_mov_b32 s3, 0"]
    L += ["v_lshrrev_b32 v1, 6, v0", f"v_and_b32 {vLane}, 63, v0", f"v_lshlrev_b32 {vLin}, 4, {vLane}",
          f"v_readfirstlane_b32 {sW}, v1"]
    if MAPPING == 'B':
        L += [f"s_and_b32 {sT0}, s2, 7", f"s_lshr_b32 {sT1}, s2, 3",
              f"s_lshr_b32 {sR}, {sT0}, 1", f"s_lshl_b32 {sR}, {sR}, 2", f"s_and_b32 {sT2}, {sT1}, 3", f"s_add_u32 {sR}, {sR}, {sT2}",
              f"s_and_b32 {sC}, {sT0}, 1", f"s_lshl_b32 {sC}, {sC}, 3", f"s_lshr_b32 {sT2}, {sT1}, 2", f"s_add_u32 {sC}, {sC}, {sT2}"]
    else:
        L += [f"s_and_b32 {sT0}, s2, 7", f"s_lshr_b32 {sT1}, s2, 3",
              f"s_lshl_b32 {sR}, {sT0}, 1", f"s_and_b32 {sT2}, {sT1}, 1", f"s_add_u32 {sR}, {sR}, {sT2}",
              f"s_lshr_b32 {sC}, {sT1}, 1"]
    L += [f"s_lshr_b32 {sH}, {sW}, 2", f"s_and_b32 {sRG}, {sW}, 3",
          f"s_lshl_b32 {sCu}, {sR}, 4", f"s_add_u32 {sCu}, {sCu}, {sC}",
          f"s_lshl_b32 {sRt}, {sR}, 2", f"s_add_u32 {sRt}, {sRt}, {sRG}"]
    L += [f"v_lshrrev_b32 {vT0}, 4, {vLane}", f"v_lshlrev_b32 {vT0}, 14, {vT0}", f"v_and_b32 {vT1}, 15, {vLane}",
          f"v_lshl_add_u32 {vX4}, {vT1}, 4, {vT0}",
          f"v_lshrrev_b32 {vT0}, 2, {vLane}", f"v_and_b32 {vT1}, 3, {vLane}", f"v_lshlrev_b32 {vT1}, 4, {vT1}",
          f"v_mul_u32_u24 {vW64g}, 3584, {vT0}", f"v_add_u32 {vW64g}, {vW64g}, {vT1}",
          f"v_lshl_add_u32 {vW64}, {vT0}, 10, {vT1}",
          f"v_lshrrev_b32 {vT0}, 1, {vLane}", f"v_and_b32 {vT1}, 1, {vLane}", f"v_lshlrev_b32 {vT1}, 4, {vT1}",
          f"v_mul_u32_u24 {vW32g}, 3584, {vT0}", f"v_add_u32 {vW32g}, {vW32g}, {vT1}"]
    L += [f"s_lshl_b32 {sT0}, {sR}, 17",
          f"s_lshr_b32 {sT1}, {sRG}, 1", f"s_lshl_b32 {sT1}, {sT1}, 16", f"s_and_b32 {sT2}, {sRG}, 1", f"s_lshl_b32 {sT2}, {sT2}, 13",
          f"s_add_u32 {sXb8}, {sT0}, {sT1}", f"s_add_u32 {sXb8}, {sXb8}, {sT2}", f"s_mul_i32 {sXl8}, {sRG}, {8*1040}",
          f"s_lshl_b32 {sT1}, {sH}, 16", f"s_lshl_b32 {sT2}, {sRG}, 12", f"s_add_u32 {sXb4}, {sT0}, {sT1}", f"s_add_u32 {sXb4}, {sXb4}, {sT2}",
          f"s_mul_i32 {sXl4}, {sW}, {4*1040}",
          f"s_mul_i32 {sT0}, {sC}, 224", f"s_and_b32 {sT1}, {sC}, 1", f"s_lshl_b32 {sT2}, {sT1}, 5", f"s_add_u32 {sFblk}, {sT0}, {sT2}",
          f"s_xor_b32 {sT1}, {sT1}, 1", f"s_mul_i32 {sT1}, {sT1}, 192", f"s_add_u32 {sFhalf}, {sT0}, {sT1}",
          f"s_lshl_b32 {sT0}, {sW}, 15", f"s_lshl_b32 {sT1}, {sC}, 6", f"s_add_u32 {sWq2}, {sT0}, {sT1}",
          f"s_mul_i32 {sT0}, {sW}, {32*3584}", f"s_add_u32 {sWg2}, {sT0}, {sFblk}", f"s_add_u32 {sWg1}, {sT0}, {sFhalf}",
          f"s_lshl_b32 {sL2}, {sW}, 11", f"s_lshl_b32 {sL1}, {sW}, 10",
          f"s_mov_b32 s60, 0xffff", f"s_mov_b32 s61, 0xffff",
          f"s_mul_i32 {sAct}, {sRt}, {144*1024}", f"s_add_u32 {sAct}, {sAct}, {WS_ACT}"]
    L += ["s_waitcnt lgkmcnt(0)"]
    def srd(dst, lo, size):
        d = int(dst[2:].split(':')[0])
        return [f"s_mov_b32 s{d}, s{lo}", f"s_mov_b32 s{d+1}, s{lo+1}", f"s_mov_b32 s{d+2}, {size}", f"s_mov_b32 s{d+3}, 0x20000"]
    L += [f"s_load_dword {sNonce}, s[96:97], {WS_EPOCH}"]
    L += srd(rX, 72, 2048*1024)
    L += [f"s_and_b32 {sT0}, {sC}, 1", f"s_cmp_eq_u32 {sT0}, 0", "s_cselect_b32 s12, s76, s78", "s_cselect_b32 s13, s77, s79",
          "s_mov_b32 s14, 16384", "s_mov_b32 s15, 0x20000"]
    L += srd(rGW, 90, 1024)
    L2 = srd(rWQ, 74, 512*1024) + srd(rWO, 80, 512*1024) + srd(rWG, 84, 512*3584) + srd(rWU, 86, 512*3584)
    L2 += srd(rWD, 88, 1792*1024) + srd(rOUT, 92, 2048*1024) + srd(rWS, 96, WS_SIZE)
    return L, L2

def init_dma_H0():
    L = [f"s_lshr_b32 {sT1}, {sC}, 1", f"s_lshl_b32 {sT1}, {sT1}, 14",
         f"s_lshl_b32 {sT2}, {sR}, 17", f"s_add_u32 {sT1}, {sT1}, {sT2}", f"s_lshl_b32 {sT2}, {sRG}, 12", f"s_add_u32 {sT1}, {sT1}, {sT2}",
         f"s_mul_i32 {sT3}, {sRG}, {4*1040}"]
    for j in range(4):
        L += dma(rX, vLin, sT1, j*1024, sT3, S[3] + j*1040)
    for j in range(4):
        L += dma(rKV, vLin, sT2, j*1024, sT2, S[3] + 16640 + j*1024)
    L += dma(rGW, vLin, None, 0, None, S[3] + 33024)
    vm.issue('quick', roles=(0,), n=9)
    return L

def init_dma_H1():
    L = []
    for q in range(3):
        for j in range(8):
            L += dma(rX, vX4, sXb8, j*1024 + q*256, sXl8, S[q] + j*1040)
        vm.issue(f'st{q}', roles=(1,), n=8)
    return L

def stage_dma(n):
    sl = S[n % 4]
    L = []
    if n == 3:
        for j in range(4): L += dma(rX, vX4, sXb4, j*1024 + 3*256, sXl4, sl + j*1040)
    elif n in (4, 5):
        kh = n - 4
        for j in range(2): L += dma(rWQ, vW64, sWq2, (kh*256 + 16*j)*1024, sL2, sl + j*1024)
        L += dma(rWG, vW32g, sWg1, kh*256*3584, sL1, sl + 16384)
        L += dma(rWU, vW32g, sWg1, kh*256*3584, sL1, sl + 16384 + 8192 + 128)
    else:
        b, kh = (n - 6) // 2, (n - 6) % 2
        for j in range(2): L += dma(rWG, vW64g, sWg2, (kh*256 + 16*j)*3584 + 64*b, sL2, sl + j*1024)
        for j in range(2): L += dma(rWU, vW64g, sWg2, (kh*256 + 16*j)*3584 + 64*b, sL2, sl + 16384 + 32 + j*1024)
    vm.issue(f'st{n}', n=4)
    return L

def quick_chain(kind):
    L = []
    def reads(s):
        r = [f"ds_read_b128 {vr(128+4*s,4)}, {vT0} offset:{s*64}"]
        if kind == 'G': r += [f"ds_read_b128 {vr(192+4*s,4)}, {vT1} offset:{s*64}"]
        else: r += [f"ds_read_b64_tr_b16 {vr(192+4*s,2)}, {vT1} offset:{s*1024}", f"ds_read_b64_tr_b16 {vr(194+4*s,2)}, {vT1} offset:{s*1024+128}"]
        return r
    per = 2 if kind == 'G' else 3
    D = 4
    for s in range(D): L += reads(s)
    for s in range(16):
        ahead = min(16, s + D) - (s + 1)
        L.append(f"s_waitcnt lgkmcnt({ahead*per})")
        a, b = vr(192+4*s,4), vr(128+4*s,4)
        if kind == 'V': a, b = b, a
        L.append(f"v_mfma_f32_16x16x32_bf16 v[16:19], {a}, {b}, {'0' if s == 0 else 'v[16:19]'}")
        if s + D < 16: L += reads(s + D)
    return L

def quick_tasks():
    L = [f"s_cmp_gt_u32 {sW}, 1", "s_cbranch_scc1 L_quick_done",
         f"v_and_b32 {vT2}, 15, {vLane}", f"v_lshrrev_b32 {vT3}, 4, {vLane}",
         f"v_mul_u32_u24 {vT0}, 1040, {vT2}", f"v_lshl_add_u32 {vT0}, {vT3}, 4, {vT0}", f"v_add_u32 {vT0}, {S[3]}, {vT0}",
         f"s_and_b32 {sT1}, {sC}, 1",
         f"s_cmp_eq_u32 {sW}, 1", "s_cbranch_scc1 L_quick_gate"]
    W0 = [f"v_lshlrev_b32 {vT1}, 8, {vT3}", f"v_lshl_add_u32 {vT1}, {vT2}, 3, {vT1}", f"v_add_u32 {vT1}, {S[3]+16640}, {vT1}",
          f"s_lshr_b32 {sT2}, {sC}, 2", f"s_lshl_b32 {sT3}, {sR}, 2", f"s_add_u32 {sT2}, {sT2}, {sT3}", f"s_lshl_b32 {sT2}, {sT2}, 11",
          f"s_lshr_b32 {sT3}, {sC}, 1", f"s_and_b32 {sT3}, {sT3}, 1", f"s_lshl_b32 {sT3}, {sT3}, 8", f"s_add_u32 {sT2}, {sT2}, {sT3}",
          f"s_cmp_eq_u32 {sT1}, 1", "s_cbranch_scc1 L_quick_V"]
    K = quick_chain('K') + [
          f"v_and_b32 {vT0}, 1, {vT3}", f"v_lshlrev_b32 {vT0}, 9, {vT0}", f"v_lshl_add_u32 {vT0}, {vT2}, 4, {vT0}",
          f"v_lshrrev_b32 {vT1}, 1, {vT3}", f"v_lshl_add_u32 {vT0}, {vT1}, 3, {vT0}", "s_nop 2",
          "v_cvt_pk_bf16_f32 v20, v16, v17", "v_cvt_pk_bf16_f32 v21, v18, v19",
          f"buffer_store_dwordx2 v[20:21], {vT0}, {rWS}, {sT2} offen sc1",
          "v_mul_f32 v22, v16, v16", "v_fmac_f32 v22, v17, v17", "v_fmac_f32 v22, v18, v18", "v_fmac_f32 v22, v19, v19",
          "v_mov_b32 v23, v22", "s_nop 1", "v_permlane16_swap_b32 v22, v23", "s_nop 0", "v_add_f32 v22, v22, v23",
          "v_mov_b32 v23, v22", "s_nop 1", "v_permlane32_swap_b32 v22, v23", "s_nop 0", "v_add_f32 v22, v22, v23",
          "s_nop 1", "v_max_f32_dpp v22, v22, v22 row_ror:8 row_mask:0xf bank_mask:0xf",
          "s_nop 1", "v_max_f32_dpp v22, v22, v22 row_ror:4 row_mask:0xf bank_mask:0xf",
          "s_nop 1", "v_max_f32_dpp v22, v22, v22 row_ror:2 row_mask:0xf bank_mask:0xf",
          "s_nop 1", "v_max_f32_dpp v22, v22, v22 row_ror:1 row_mask:0xf bank_mask:0xf",
          "v_mov_b32 v25, v22",
          "s_branch L_quick_done"]
    V = ["L_quick_V:"] + quick_chain('V') + [
          f"v_lshrrev_b32 {vT0}, 1, {vT3}", f"v_lshlrev_b32 {vT0}, 9, {vT0}", f"v_lshl_add_u32 {vT0}, {vT2}, 4, {vT0}",
          f"v_and_b32 {vT1}, 1, {vT3}", f"v_lshl_add_u32 {vT0}, {vT1}, 3, {vT0}", "s_nop 2",
          "v_cvt_pk_bf16_f32 v20, v16, v17", "v_cvt_pk_bf16_f32 v21, v18, v19",
          f"buffer_store_dwordx2 v[20:21], {vT0}, {rWS}, {sT2} offen offset:1024 sc1",
          "v_mov_b32 v25, 0",
          "s_branch L_quick_done"]
    G = ["L_quick_gate:", f"s_cmp_eq_u32 {sT1}, 1", "s_cbranch_scc1 L_quick_done",
          f"v_lshlrev_b32 {vT1}, 4, {vT3}", f"v_add_u32 {vT1}, {S[3]+33024}, {vT1}"] + quick_chain('G') + [
          f"s_lshl_b32 {sT2}, {sR}, 9", f"s_lshr_b32 {sT3}, {sC}, 1", f"s_lshl_b32 {sT3}, {sT3}, 6", f"s_add_u32 {sT2}, {sT2}, {sT3}",
          f"s_add_u32 {sT2}, {sT2}, {WS_GATE}", f"v_lshlrev_b32 {vT0}, 2, {vT2}", "s_nop 2",
          f"buffer_store_dword v16, {vT0}, {rWS}, {sT2} offen sc1"]
    full = L + W0 + K + V + G + ["L_quick_done:"]
    traces = {'K': L + W0 + K, 'V': L + W0 + V, 'G': L + G}
    return full, traces

def kv_flag():
    return [f"s_cmp_lg_u32 {sW}, 0", "s_cbranch_scc1 L_kvflag_done",
            f"v_mov_b32 v24, {sNonce}", f"s_lshl_b32 {sT1}, {sCu}, 6", f"s_add_u32 {sT1}, {sT1}, {WS_FKV}", f"v_mov_b32 {vT0}, 0",
            "s_mov_b64 exec, 1",
            f"buffer_store_dwordx2 v[24:25], {vT0}, {rWS}, {sT1} offen sc1",
            "s_mov_b64 exec, -1",
            "L_kvflag_done:"]

def x_reads(q):
    sl = S[q % 4]
    L = [f"ds_read_b128 {vr(XF + 32*q + 4*s, 4)}, {vXrd} offset:{s*32}" for s in range(8)]
    return L

def chain(acc, kh, vaddr, kstride, second):
    L = []
    def reads(s):
        b = WF + 4 * (s % 4)
        return [f"ds_read_b64_tr_b16 {vr(b,2)}, {vaddr} offset:{s*kstride}", f"ds_read_b64_tr_b16 {vr(b+2,2)}, {vaddr} offset:{s*kstride+second}"]
    D = 3
    pre = []
    for s in range(D): pre += reads(s)
    body = []
    for s in range(16):
        g = []
        if s + D < 16: g += reads(s + D)
        ahead = min(16, s + D + 1) - (s + 1)
        g.append(f"s_waitcnt lgkmcnt({2*ahead})")
        c = '0' if (kh == 0 and s == 0) else vr(acc, 16)
        g.append(f"v_mfma_f32_32x32x16_bf16 {vr(acc,16)}, {vr(WF + 4*(s%4), 4)}, {vr(XF + 64*kh + 4*s, 4)}, {c}")
        body.append(g)
    return pre, body

def gelu(acc, kstep_sgpr_expr):
    T = GT
    L = []
    for i in range(8): L.append(f"v_mul_f32 v{T+i}, v{acc+i}, v{acc+i}")
    for i in range(8): L.append(f"v_fma_f32 v{T+i}, v{T+i}, {sC2}, v{T+8}")
    for i in range(8): L.append(f"v_mul_f32 v{T+i}, v{T+i}, v{acc+i}")
    for i in range(8): L.append(f"v_exp_f32 v{T+i}, v{T+i}")
    for i in range(8): L.append(f"v_add_f32 v{T+i}, 1.0, v{T+i}")
    for i in range(8): L.append(f"v_rcp_f32 v{T+i}, v{T+i}")
    for i in range(8): L.append(f"v_mul_f32 v{T+i}, v{T+i}, v{acc+i}")
    for i in range(8): L.append(f"v_mul_f32 v{T+i}, v{T+i}, v{acc+8+i}")
    for i in range(4): L.append(f"v_cvt_pk_bf16_f32 v{T+12+i}, v{T+2*i}, v{T+2*i+1}")
    st = kstep_sgpr_expr + [f"buffer_store_dwordx4 {vr(T+12,4)}, {vLin}, {rWS}, {sT1} offen sc1"]
    return L, st

def h_addr_block(b):
    return [f"s_lshl_b32 {sT1}, {sFblk}, 5", f"s_lshl_b32 {sT2}, {sH}, 10", f"s_add_u32 {sT1}, {sT1}, {sT2}",
            f"s_add_u32 {sT1}, {sT1}, {sAct}", f"s_add_u32 {sT1}, {sT1}, {2*b*1024}"]
def h_addr_half():
    return [f"s_lshl_b32 {sT1}, {sFhalf}, 5", f"s_add_u32 {sT1}, {sT1}, {sAct}"]

def q_epilogue(acc):
    L = [f"s_mov_b32 {sT1}, {QSCALE}"]
    for i in range(16): L.append(f"v_mul_f32 v{acc+i}, {sT1}, v{acc+i}")
    for i in range(4): L.append(f"v_cvt_pk_bf16_f32 v{Q+i}, v{acc+2*i}, v{acc+2*i+1}")
    for i in range(4): L.append(f"v_cvt_pk_bf16_f32 v{GT+12+i}, v{acc+8+2*i}, v{acc+8+2*i+1}")
    L += [f"v_mul_f32 {vQn}, v{acc}, v{acc}", f"v_mul_f32 v{GT}, v{acc+8}, v{acc+8}"]
    for i in range(1, 8): L += [f"v_fmac_f32 {vQn}, v{acc+i}, v{acc+i}", f"v_fmac_f32 v{GT}, v{acc+8+i}, v{acc+8+i}"]
    L += [f"s_lshl_b32 {sT1}, {sRG}, 10", f"s_add_u32 {sT1}, {sT1}, {QH_OFF}", f"v_add_u32 {vT0}, {sT1}, {vLin}",
          f"s_lshl_b32 {sT1}, {sRG}, 8", f"s_add_u32 {sT1}, {sT1}, {QN_OFF}", f"v_lshlrev_b32 {vT1}, 2, {vLane}", f"v_add_u32 {vT1}, {sT1}, {vT1}",
          f"ds_write_b128 {vT0}, {vr(GT+12,4)}", f"ds_write_b32 {vT1}, v{GT}"]
    return L

def q_fetch():
    return [f"s_lshl_b32 {sT1}, {sRG}, 10", f"s_add_u32 {sT1}, {sT1}, {QH_OFF}", f"v_add_u32 {vT0}, {sT1}, {vLin}",
            f"s_lshl_b32 {sT1}, {sRG}, 8", f"s_add_u32 {sT1}, {sT1}, {QN_OFF}", f"v_lshlrev_b32 {vT1}, 2, {vLane}", f"v_add_u32 {vT1}, {sT1}, {vT1}",
            f"ds_read_b128 {vr(Q,4)}, {vT0}", f"ds_read_b32 {vQn}, {vT1}", "s_waitcnt lgkmcnt(0)"]

PV = 112
def kvpoll_issue():
    L = [f"v_lshlrev_b32 {vT2}, 6, {vLane}"]
    for k in range(4):
        L += [f"s_mov_b32 {sT1}, {WS_FKV + k*4096}", f"buffer_load_dwordx2 {vr(PV+2*k,2)}, {vT2}, {rWS}, {sT1} offen sc1"]
    return L
def kvpoll_check(nyoung):
    L = [f"s_waitcnt vmcnt({nyoung})", "L_kvp_chk:",
         f"v_cmp_ne_u32 vcc, {sNonce}, v{PV}", f"v_cmp_ne_u32 s[96:97], {sNonce}, v{PV+2}", "s_nop 0", "s_or_b64 vcc, vcc, s[96:97]",
         f"v_cmp_ne_u32 s[96:97], {sNonce}, v{PV+4}", "s_nop 0", "s_or_b64 vcc, vcc, s[96:97]",
         f"v_cmp_ne_u32 s[96:97], {sNonce}, v{PV+6}", "s_nop 0", "s_or_b64 vcc, vcc, s[96:97]",
         "s_cbranch_vccz L_kvp_ok", "s_add_u32 s3, s3, 1", f"s_cmp_gt_u32 s3, {SPIN}", "s_cbranch_scc1 L_kvp_ok", "s_sleep 1"] + kvpoll_issue() + ["s_waitcnt vmcnt(0)", "s_branch L_kvp_chk", "L_kvp_ok:"]
    L2 = [f"v_max_f32 v{PV+1}, v{PV+1}, v{PV+3}", f"v_max3_f32 v{PV+1}, v{PV+1}, v{PV+5}, v{PV+7}"]
    a, b = PV + 1, PV
    L2 += [f"v_mov_b32 v{b}, v{a}", "s_nop 1", f"v_permlane16_swap_b32 v{a}, v{b}", "s_nop 0", f"v_max_f32 v{a}, v{a}, v{b}",
          f"v_mov_b32 v{b}, v{a}", "s_nop 1", f"v_permlane32_swap_b32 v{a}, v{b}", "s_nop 0", f"v_max_f32 v{a}, v{a}, v{b}"]
    for r in (8, 4, 2, 1): L2 += ["s_nop 1", f"v_max_f32_dpp v{a}, v{a}, v{a} row_ror:{r} row_mask:0xf bank_mask:0xf"]
    L2 += [f"v_mov_b32 v{b}, {KN_OFF}", f"ds_write_b32 v{b}, v{a}",
          "s_cmp_lg_u32 s2, 0", "s_cbranch_scc1 L_kvp_end",
          f"v_mov_b32 v{b}, {sNonce}", f"v_mov_b32 v{a}, {WS_EPOCH}", "s_mov_b64 exec, 1",
          f"buffer_store_dword v{b}, v{a}, {rWS}, 0 offen sc1", "s_mov_b64 exec, -1", "L_kvp_end:"]
    return L, L2

def att_iter(t, p2, slow):
    cur, nxt = SB[t & 1], SB[(t + 1) & 1]
    def ex(i):
        r = [f"v_exp_f32 v{cur+i}, v{cur+i}"]
        if slow: r = [f"v_sub_f32 v{cur+i}, v{cur+i}, {vM}"] + r
        return r
    L = ["s_waitcnt lgkmcnt(0)"]
    for i in (0, 1, 2): L += ex(i)
    L.append(f"v_smfmac_f32_32x32x32_bf16 {vr(O,16)}, {vr(VB[(t+1)&1]+4,4)}, {vr(nxt+8,8)}, {vIdx}")
    va, vt = (vKc, t + 1) if t < 3 else (vKn, 0)
    ka, kt = (vKc, t + 2) if t < 2 else (vKn, t - 2)
    L += [f"s_mov_b64 exec, {sVm}",
          f"ds_read_b128 {vr(VB[(t+1)&1],4)}, {va} offset:{vt*2048+1024}",
          f"ds_read_b128 {vr(VB[(t+1)&1]+4,4)}, {va} offset:{vt*2048+1024+256}",
          "s_mov_b64 exec, -1"]
    for i in (3, 4, 5): L += ex(i)
    L.append(f"v_mfma_f32_32x32x16_bf16 {vr(nxt,16)}, {vr(KB[(t+1)&1],4)}, {vr(Q,4)}, 0")
    L.append(f"ds_read_b128 {vr(KB[t&1],4)}, {ka} offset:{kt*2048}")
    for i in (6, 7, 8, 9): L += ex(i)
    L.append(f"v_smfmac_f32_32x32x32_bf16 {vr(O,16)}, {vr(VB[t&1],4)}, {vr(cur,8)}, {vIdx}")
    if p2:
        wa, wt = (vWc, t + 1) if t < 3 else (vWn, 0)
        L += [f"ds_read_b64_tr_b16 {vr(WDF[(t+1)&1],2)}, {wa} offset:{wt*1024}",
              f"ds_read_b64_tr_b16 {vr(WDF[(t+1)&1]+2,2)}, {wa} offset:{wt*1024+512}"]
    for i in (10, 11, 12): L += ex(i)
    if p2:
        L += ["s_waitcnt vmcnt(5)",
              f"v_mfma_f32_32x32x16_bf16 {vr(ACCB,16)}, {vr(WDF[t&1],4)}, {vr(HB+4*t,4)}, {vr(ACCB,16)}",
              f"buffer_load_dwordx4 {vr(HB+4*t,4)}, {vLin}, {rWS}, {sHo} offen offset:{t*1024} sc1"]
    for i in (13, 14, 15): L += ex(i)
    return L

def stage_top(p2):
    L = [f"s_waitcnt vmcnt({6 if p2 else 1})", "s_barrier"]
    L += [f"s_add_u32 {sT1}, {sRing}, 16384", f"s_and_b32 {sT1}, {sT1}, 0x7fff", f"s_add_u32 m0, {sT1}, {sL1}",
          f"s_add_u32 {sKVo}, {sKVo}, 8192",
          f"buffer_load_dwordx4 {vLin}, {rWS}, {sKVo} offen sc1 lds"]
    if p2:
        L += [f"s_add_u32 {sT1}, {sRingW}, 16384", f"s_and_b32 {sT1}, {sT1}, 0x7fff", f"s_add_u32 {sT1}, {sT1}, {WDR}", f"s_add_u32 m0, {sT1}, {sL1}",
              f"s_add_u32 {sWdo}, {sWdo}, {128*1024}",
              f"buffer_load_dwordx4 {vW64}, {rWD}, {sWdo} offen lds",
              f"s_add_u32 {sHo}, {sHo}, 8192"]
    return L

def stage_end(p2):
    L = [f"s_add_u32 {sRing}, {sRing}, 8192", f"s_and_b32 {sRing}, {sRing}, 0x7fff",
         f"v_mov_b32 {vKc}, {vKn}", f"v_add_u32 {vKn}, {sRing}, {vLin}"]
    if p2:
        L += [f"s_add_u32 {sRingW}, {sRingW}, 8192", f"s_and_b32 {sRingW}, {sRingW}, 0x7fff",
              f"v_mov_b32 {vWc}, {vWn}", f"v_add_u32 {vWn}, {sRingW}, {vWdb}"]
    L += [f"s_add_u32 {sStage}, {sStage}, 1"]
    return L

def hflag_block(sfx):
    return [f"s_cmp_lg_u32 {sStage}, 1", f"s_cbranch_scc1 L_hf_done{sfx}", f"s_cmp_lg_u32 {sW}, 0", f"s_cbranch_scc1 L_hf_done{sfx}",
            f"v_mov_b32 {vT1}, {sNonce}", f"s_lshl_b32 {sT1}, {sCu}, 6", f"s_add_u32 {sT1}, {sT1}, {WS_FH}", f"v_mov_b32 {vT0}, 0",
            "s_mov_b64 exec, 1", f"buffer_store_dword {vT1}, {vT0}, {rWS}, {sT1} offen sc1", "s_mov_b64 exec, -1",
            f"L_hf_done{sfx}:"]

def hpoll_block(sfx):
    pre = [f"s_cmp_lg_u32 {sStage}, 3", f"s_cbranch_scc1 L_hp_done{sfx}"]
    L = [f"v_and_b32 {vT0}, 15, {vLane}", f"v_lshlrev_b32 {vT0}, 6, {vT0}", f"s_lshl_b32 {sT1}, {sR}, 10", f"s_add_u32 {sT1}, {sT1}, {WS_FH}",
         f"L_hp_loop{sfx}:",
         f"buffer_load_dword {vT1}, {vT0}, {rWS}, {sT1} offen sc1", "s_waitcnt vmcnt(0)",
         f"v_cmp_ne_u32 vcc, {sNonce}, {vT1}", "s_nop 0", f"s_cbranch_vccz L_hp_ok{sfx}", "s_add_u32 s3, s3, 1", f"s_cmp_gt_u32 s3, {SPIN}", f"s_cbranch_scc1 L_hp_ok{sfx}", "s_sleep 1", f"s_branch L_hp_loop{sfx}",
         f"L_hp_ok{sfx}:",
         f"v_and_b32 {vT0}, 31, {vLane}", f"v_lshlrev_b32 {vT0}, 2, {vT0}", f"s_lshl_b32 {sT1}, {sRt}, 7", f"s_add_u32 {sT1}, {sT1}, {WS_GATE}",
         f"buffer_load_dword {vG}, {vT0}, {rWS}, {sT1} offen sc1"]
    for t in range(4): L.append(f"buffer_load_dwordx4 {vr(HB+4*t,4)}, {vLin}, {rWS}, {sHo} offen offset:{t*1024} sc1")
    L += [f"ds_read_b64_tr_b16 {vr(WDF[0],2)}, {vWc}", f"ds_read_b64_tr_b16 {vr(WDF[0]+2,2)}, {vWc} offset:512"]
    return pre, L, [f"L_hp_done{sfx}:"]

def att_loops(slow):
    sfx = '_s' if slow else '_f'
    hp = hpoll_block(sfx)
    A_top = stage_top(False)
    A_body = sum([att_iter(t, False, slow) for t in range(4)], []) + stage_end(False)
    B = stage_top(True) + sum([att_iter(t, True, slow) for t in range(4)], []) + stage_end(True)
    code = [f"L_loopA{sfx}:"] + A_top + hflag_block(sfx) + hp[0] + hp[1] + hp[2] + A_body + [f"s_cmp_lt_u32 {sStage}, 4", f"s_cbranch_scc1 L_loopA{sfx}"]
    code += ts('loopA_end') if not slow else []
    code += [f"L_loopB{sfx}:"] + B + [f"s_cmp_lt_u32 {sStage}, 16", f"s_cbranch_scc1 L_loopB{sfx}"]
    trace = A_top + A_body + A_top + A_body + A_top + hp[1] + A_body + B + B + B
    return code, trace

def slow_prepass():
    L = [f"v_mov_b32 {vM}, 0xff800000", f"s_mov_b32 {sT1}, 0", "L_pre_loop:",
         f"buffer_load_dwordx4 {vr(KB[0],4)}, {vLin}, {rWS}, {sT1} offen sc1", "s_waitcnt vmcnt(0)",
         f"v_mfma_f32_32x32x16_bf16 {vr(SB[0],16)}, {vr(KB[0],4)}, {vr(Q,4)}, 0", "s_nop 11"]
    for i in range(8): L.append(f"v_max3_f32 {vM}, {vM}, v{SB[0]+2*i}, v{SB[0]+2*i+1}")
    L += [f"s_add_u32 {sT1}, {sT1}, 2048", f"s_cmp_lt_u32 {sT1}, 131072", "s_cbranch_scc1 L_pre_loop",
          f"v_mov_b32 {vT0}, {vM}", "s_nop 1", f"v_permlane32_swap_b32 {vM}, {vT0}", "s_nop 0", f"v_max_f32 {vM}, {vM}, {vT0}"]
    return L

def att_prologue():
    L = []
    for b in VB:
        for i in range(8): L.append(f"v_mov_b32 v{b+i}, 0x3f803f80")
    for i in range(16): L.append(f"v_mov_b32 v{O+i}, 0")
    for i in range(16): L.append(f"v_mov_b32 v{ACCB+i}, 0")
    for i in range(8): L.append(f"v_mov_b32 v{SB[1]+8+i}, 0")
    L += [f"v_mov_b32 {vIdx}, 0xdddddddd",
          f"v_mov_b32 {vKc}, {vLin}", f"v_add_u32 {vKn}, 8192, {vLin}", f"s_mov_b32 {sRing}, 8192", f"s_mov_b32 {sRingW}, 8192",
          f"s_mov_b32 {sStage}, 0",
          f"v_lshrrev_b32 {vT0}, 5, {vLane}", f"v_lshlrev_b32 {vT0}, 8, {vT0}", f"v_bfe_u32 {vT1}, {vLane}, 2, 2", f"v_lshl_add_u32 {vT0}, {vT1}, 6, {vT0}",
          f"v_bfe_u32 {vT1}, {vLane}, 4, 1", f"v_lshl_add_u32 {vT0}, {vT1}, 5, {vT0}", f"v_and_b32 {vT1}, 3, {vLane}", f"v_lshl_add_u32 {vT3}, {vT1}, 3, {vT0}",
          f"s_lshl_b32 {sT1}, {sH}, 12", f"s_add_u32 {sT1}, {sT1}, {WDR}", f"v_add_u32 {vWdb}, {sT1}, {vT3}",
          f"v_mov_b32 {vWc}, {vWdb}", f"v_add_u32 {vWn}, 8192, {vWdb}",
          f"s_lshl_b32 {sHo}, {sH}, 12", f"s_add_u32 {sHo}, {sHo}, {sAct}"]
    return L

def tail():
    L = []
    L += [f"s_add_u32 {sHo}, {sHo}, 8192"]
    for t in range(4): L.append(f"buffer_load_dwordx4 {vr(HB+16+4*t,4)}, {vLin}, {rWS}, {sHo} offen offset:{t*1024} sc1")
    L += ["s_waitcnt lgkmcnt(0)",
          f"v_smfmac_f32_32x32x32_bf16 {vr(O,16)}, {vr(VB[1]+4,4)}, {vr(SB[1]+8,8)}, {vIdx}",
          f"s_lshl_b32 {sT1}, {sC}, 1", f"s_add_u32 {sT1}, {sT1}, {sH}", f"s_lshl_b32 {sT2}, {sT1}, 10",
          f"s_add_u32 {sT2}, {sT2}, {sAct}", f"s_add_u32 {sT2}, {sT2}, {112*1024}", "s_nop 6",
          f"v_rcp_f32 {vT0}, v{O+8}", "s_nop 0"]
    for i in range(8): L.append(f"v_mul_f32 v{O+i}, v{O+i}, {vT0}")
    for i in range(4): L.append(f"v_cvt_pk_bf16_f32 v{O+8+i}, v{O+2*i}, v{O+2*i+1}")
    L += [f"buffer_store_dwordx4 {vr(O+8,4)}, {vLin}, {rWS}, {sT2} offen sc1"]
    L += ts('att_end')
    L += ["s_waitcnt vmcnt(9)", "s_barrier"]
    for n in range(8):
        a, o = (vWc, n + 1) if n < 3 else (vWn, n - 3)
        g = []
        if n < 7:
            g += [f"ds_read_b64_tr_b16 {vr(WDF[(n+1)&1],2)}, {a} offset:{o*1024}", f"ds_read_b64_tr_b16 {vr(WDF[(n+1)&1]+2,2)}, {a} offset:{o*1024+512}"]
        g += [f"s_waitcnt vmcnt({8-n}) lgkmcnt({2 if n < 7 else 0})",
              f"v_mfma_f32_32x32x16_bf16 {vr(ACCB,16)}, {vr(WDF[n&1],4)}, {vr(HB+4*n,4)}, {vr(ACCB,16)}"]
        L += g
    L += [f"s_lshl_b32 {sT2}, {sRt}, 5", f"s_add_u32 {sT1}, {sT1}, {sT2}", f"s_lshl_b32 {sT1}, {sT1}, 6", f"s_add_u32 {sT1}, {sT1}, {WS_FO}",
          f"v_mov_b32 {vT1}, {sNonce}", f"v_mov_b32 {vT0}, 0",
          "s_waitcnt vmcnt(0)"] + ts('o_acked') + [
          "s_mov_b64 exec, 1", f"buffer_store_dword {vT1}, {vT0}, {rWS}, {sT1} offen sc1", "s_mov_b64 exec, -1"]
    L += [f"s_mov_b32 {sT3}, {f2u(-LOG2E)}", f"v_mul_f32 {vG}, {sT3}, {vG}", f"v_exp_f32 {vG}, {vG}", "s_nop 0", f"v_add_f32 {vG}, 1.0, {vG}", f"v_rcp_f32 {vG}, {vG}"]
    L += [f"s_lshl_b32 {sT3}, {sH}, 14", f"s_add_u32 {sT3}, {sT3}, {WOB}", f"v_add_u32 {vWc}, {sT3}, {vT3}"]
    def reads(s):
        b = 64 + 4 * (s % 4)
        return [f"ds_read_b64_tr_b16 {vr(b,2)}, {vWc} offset:{s*1024}", f"ds_read_b64_tr_b16 {vr(b+2,2)}, {vWc} offset:{s*1024+512}"]
    for s in range(3): L += reads(s)
    L += [f"v_and_b32 {vT0}, 15, {vLane}", f"v_lshlrev_b32 {vT0}, 6, {vT0}",
          f"s_lshl_b32 {sT1}, {sRt}, 11", f"s_lshl_b32 {sT2}, {sH}, 10", f"s_add_u32 {sT1}, {sT1}, {sT2}", f"s_add_u32 {sT1}, {sT1}, {WS_FO}",
          f"s_lshl_b32 {sT2}, {sH}, 14", f"s_add_u32 {sT2}, {sT2}, {sAct}", f"s_add_u32 {sT2}, {sT2}, {112*1024}",
          "L_op_loop:",
          f"buffer_load_dword {vT1}, {vT0}, {rWS}, {sT1} offen sc1", "s_waitcnt vmcnt(0)",
          f"v_cmp_ne_u32 vcc, {sNonce}, {vT1}", "s_nop 0", "s_cbranch_vccz L_op_ok", "s_add_u32 s3, s3, 1", f"s_cmp_gt_u32 s3, {SPIN}", "s_cbranch_scc0 L_op_loop",
          "L_op_ok:"] + ts('o_polled')
    for s in range(16):
        if s % 4 == 0 and s: L.append(f"s_add_u32 {sT2}, {sT2}, 4096")
        L.append(f"buffer_load_dwordx4 {vr(OF+4*s,4)}, {vLin}, {rWS}, {sT2} offen offset:{(s%4)*1024} sc1")
    for s in range(16):
        if s + 3 < 16: L += reads(s + 3)
        ahead = min(16, s + 4) - (s + 1)
        L += [f"s_waitcnt vmcnt({15-s}) lgkmcnt({2*ahead})",
              f"v_mfma_f32_32x32x16_bf16 {vr(ACCA,16)}, {vr(64+4*(s%4),4)}, {vr(OF+4*s,4)}, {'0' if s == 0 else vr(ACCA,16)}"]
    L += [f"s_lshl_b32 {sT1}, {sRG}, 12", f"s_lshl_b32 {sT2}, {sH}, 11", f"s_add_u32 {sT1}, {sT1}, {XCH}",
          f"s_add_u32 {sT3}, {sT1}, {sT2}", f"v_add_u32 {vT0}, {sT3}, {vLin}",
          f"s_xor_b32 {sT2}, {sT2}, 2048", f"s_add_u32 {sT3}, {sT1}, {sT2}", f"v_add_u32 {vT1}, {sT3}, {vLin}",
          f"v_and_b32 {vT2}, 31, {vLane}", f"v_lshlrev_b32 {vT2}, 10, {vT2}", f"v_lshrrev_b32 {vT3}, 5, {vLane}", f"v_lshl_add_u32 {vT2}, {vT3}, 4, {vT2}",
          f"s_lshl_b32 {sT1}, {sRt}, 15", f"s_lshl_b32 {sT2}, {sC}, 6", f"s_add_u32 {sT1}, {sT1}, {sT2}", f"s_lshl_b32 {sT2}, {sH}, 5", f"s_add_u32 {sT1}, {sT1}, {sT2}"]
    for i in range(16): L.append(f"v_sub_f32 v{ACCA+i}, v{ACCA+i}, v{ACCB+i}")
    for i in range(16): L.append(f"v_fma_f32 v{ACCA+i}, v{ACCA+i}, {vG}, v{ACCB+i}")
    def fin(keep, send):
        r = [f"ds_write_b128 {vT0}, {vr(send,4)}", f"ds_write_b128 {vT0}, {vr(send+4,4)} offset:1024", "s_waitcnt lgkmcnt(0)", "s_barrier",
             f"ds_read_b128 {vr(16,4)}, {vT1}", f"ds_read_b128 {vr(20,4)}, {vT1} offset:1024", "s_waitcnt lgkmcnt(0)"]
        for i in range(8): r.append(f"v_add_f32 v{16+i}, v{16+i}, v{keep+i}")
        return r
    f0, f1 = fin(ACCA, ACCA + 8), fin(ACCA + 8, ACCA)
    post = [f"v_cvt_pk_bf16_f32 v{24+i}, v{16+2*i}, v{17+2*i}" for i in range(4)]
    post += ["s_nop 1", "v_permlane32_swap_b32 v24, v26", "v_permlane32_swap_b32 v25, v27",
             f"buffer_store_dwordx4 v[24:27], {vT2}, {rOUT}, {sT1} offen"]
    code = L + [f"s_cmp_eq_u32 {sH}, 1", "s_cbranch_scc1 L_fin1"] + f0 + ["s_branch L_fin"] + ["L_fin1:"] + f1 + ["L_fin:"] + post
    return code, L + f0 + post

code = []
tr = {0: [], 1: []}
def emit(L, roles=(0, 1)):
    code.extend(L)
    for r in roles: tr[r].extend(L)
def emit_split(L0, L1, lab):
    code.extend([f"s_cmp_eq_u32 {sH}, 1", f"s_cbranch_scc1 L_{lab}_1"] + L0 + [f"s_branch L_{lab}_e", f"L_{lab}_1:"] + L1 + [f"L_{lab}_e:"])
    tr[0].extend(L0); tr[1].extend(L1)

e1, e2 = entry()
emit(e1)
emit_split(init_dma_H0(), init_dma_H1(), "init")
emit(e2)
emit([
      f"v_and_b32 {vT0}, 15, {vLane}", f"v_mul_u32_u24 {vXrd}, 1040, {vT0}", f"v_bfe_u32 {vT0}, {vLane}, 4, 1", f"v_lshl_add_u32 {vXrd}, {vT0}, 8, {vXrd}",
      f"v_lshrrev_b32 {vT0}, 5, {vLane}", f"v_lshl_add_u32 {vXrd}, {vT0}, 4, {vXrd}",
      f"s_lshr_b32 {sT1}, {sRG}, 1", f"s_mul_i32 {sT1}, {sT1}, {16*1040}", f"s_and_b32 {sT2}, {sRG}, 1", f"s_lshl_b32 {sT2}, {sT2}, 9", f"s_add_u32 {sT1}, {sT1}, {sT2}",
      f"v_add_u32 {vXrd}, {sT1}, {vXrd}",
      f"v_bfe_u32 {vT1}, {vLane}, 2, 2", f"v_lshl_add_u32 {vT2}, {vT0}, 3, {vT1}", f"v_and_b32 {vT3}, 3, {vLane}", f"v_lshlrev_b32 {vT3}, 3, {vT3}",
      f"v_bfe_u32 {vT1}, {vLane}, 4, 1",
      f"v_mul_u32_u24 {vWrd}, {16384+32}, {vT1}", f"v_lshl_add_u32 {vWrd}, {vT2}, 6, {vWrd}", f"v_add_u32 {vWrd}, {vWrd}, {vT3}",
      f"s_lshl_b32 {sT1}, {sH}, 5", f"s_add_u32 {sT1}, {sT1}, {S[2]}", f"v_add_u32 {vWrd}, {sT1}, {vWrd}"])
emit_split([f"v_lshlrev_b32 {vWrdA}, 6, {vT2}", f"v_lshl_add_u32 {vWrdA}, {vT1}, 5, {vWrdA}", f"v_add_u32 {vWrdA}, {vWrdA}, {vT3}", "s_waitcnt vmcnt(0)"],
           [f"v_mul_u32_u24 {vWrdA}, {8192+128}, {vT1}", f"v_lshl_add_u32 {vWrdA}, {vT2}, 5, {vWrdA}", f"v_add_u32 {vWrdA}, {vWrdA}, {vT3}", f"v_add_u32 {vWrdA}, 16384, {vWrdA}"], "wa")
vm.f[0] = []
emit(["s_waitcnt lgkmcnt(0)",
      f"s_mul_i32 {sNonce}, {sNonce}, 0x9E3779B1", f"s_add_u32 {sNonce}, {sNonce}, 0x7F4A7C15",
      f"s_mov_b32 {sC1}, {f2u(C1)}", f"s_mov_b32 {sC2}, {f2u(C2)}"])
if DEBUG_TS: emit(["s_mov_b32 s93, s0"])
emit(ts('quick_landed'))
emit(["s_barrier"])
qfull, qtr = quick_tasks()
code.extend(qfull); tr[0].extend(qtr['K'])
vm.issue('kvst', roles=(0,))
emit(ts('quick_done'))
for n in range(4):
    L = [vm.wait(f'st{n}')]
    if n == 2:
        vm.f[0] = vm.f[0]
    emit(L)
    if n == 2:
        assert 'kvst' not in vm.f[0]
        emit(kv_flag())
    emit(["s_waitcnt lgkmcnt(0)", "s_barrier"])
    emit(ts(f'X{n}'))
    emit(stage_dma(n + 3))
    emit(x_reads(n))
    if n < 3: emit([f"v_add_u32 {vXrd}, {SLOT}, {vXrd}"])
emit([f"v_mov_b32 v{GT+8}, {sC1}"])
for kh in range(2):
    n = 4 + kh
    emit([vm.wait(f'st{n}'), "s_waitcnt lgkmcnt(0)", "s_barrier"])
    emit(ts(f'A{kh}'))
    d = stage_dma(n + 3)
    p0, b0 = chain(ACC[0], kh, vWrdA, 1024, 256)
    p1, b1 = chain(ACC[0], kh, vWrdA, 512, 128)
    L0 = p0 + d + sum(b0, [])
    L1 = p1 + d + sum(b1, [])
    if kh == 0:
        L0 += [f"v_add_u32 {vWrdA}, {SLOT}, {vWrdA}"]; L1 += [f"v_add_u32 {vWrdA}, {SLOT}, {vWrdA}"]
    else:
        L0 += ["s_nop 10"] + q_epilogue(ACC[0])
    emit_split(L0, L1, f"A{kh}")
pend_g = gelu(ACC[0], h_addr_half())
for b in range(3):
    acc = ACC[(b + 1) & 1]
    for kh in range(2):
        n = 6 + 2 * b + kh
        emit([vm.wait(f'st{n}'), "s_waitcnt lgkmcnt(0)", "s_barrier"])
        emit(ts(f'B{b}{kh}'))
        pre, body = chain(acc, kh, vWrd, 1024, 256)
        d = []
        if n == 8: pass
        if n + 3 <= 11: d = stage_dma(n + 3)
        elif n == 9:
            d = [f"s_mov_b32 {sKVo}, {sL1}"]
            for k in range(3): d += dma(rWS, vLin, sL1, k*8192, sL1, KVR + k*8192, " sc1")
            d += [f"s_add_u32 {sKVo}, {sL1}, 16384"]
            vm.issue('kv012', n=3)
        elif n == 10:
            d = [f"s_lshl_b32 {sWdo}, {sW}, 14", f"s_lshl_b32 {sT1}, {sC}, 6", f"s_add_u32 {sWdo}, {sWdo}, {sT1}"]
            for k in range(3): d += dma(rWD, vW64, sWdo, k*128*1024, sL1, WDR + k*8192)
            d += [f"s_add_u32 {sWdo}, {sWdo}, {2*128*1024}"]
            vm.issue('wd012', n=3)
        elif n == 11:
            d = [f"s_lshl_b32 {sT3}, {sW}, 16", f"s_lshl_b32 {sT1}, {sC}, 6", f"s_add_u32 {sT3}, {sT3}, {sT1}", f"s_lshl_b32 {sT2}, {sW}, 12"]
            for j in range(4): d += dma(rWO, vW64, sT3, j*16*1024, sT2, WOB + j*1024)
            vm.issue('wo', n=4)
        adv = [f"v_add_u32 {vWrd}, {S[(n+1)%4] - S[n%4]}, {vWrd}"] if n < 11 and S[(n+1)%4] > S[n%4] else \
              ([f"v_subrev_u32 {vWrd}, {S[n%4] - S[(n+1)%4]}, {vWrd}"] if n < 11 else [])
        gl, gst = pend_g
        half = len(gl) // 2
        gpart = gl[:half] if kh == 0 else gl[half:]
        flat = sum(body, [])
        def mix(gp):
            out = []
            k = 0
            per = math.ceil(len(gp) / 15) if gp else 0
            for s, g in enumerate(body):
                out += g
                if s < 15:
                    out += gp[k:k+per]; k += per
            out += gp[k:]
            return out
        withg = mix(gpart) + (gst if kh == 1 else [])
        if n == 8:
            pi = kvpoll_issue()
            code.extend([f"s_cmp_lg_u32 {sW}, 7", "s_cbranch_scc1 L_kvi_done"] + pi + ["L_kvi_done:"]); tr[1].extend(pi)
        if b == 0:
            L0 = pre + d + flat + adv
            L1 = (q_fetch() if kh == 0 else []) + pre + d + withg + adv
            if kh == 1: vm.issue('hst', roles=(1,))
            emit_split(L0, L1, f"B{kh}")
        else:
            emit(pre + d + withg + adv)
            if kh == 1: vm.issue('hst')
        if n == 8:
            c1, c2 = kvpoll_check(4)
            code.extend([f"s_cmp_lg_u32 {sW}, 7", "s_cbranch_scc1 L_kvp_end"] + c1 + c2); tr[1].extend(c1[:12] + c2)
    pend_g = gelu(acc, h_addr_block(b))
emit(ts('chains_done'))
emit([f"v_mov_b32 {vT0}, {KN_OFF}", f"ds_read_b32 {vM}, {vT0}", "s_nop 8"])
emit(pend_g[0] + pend_g[1])
emit([f"v_mov_b32 {vT0}, {vQn}", "s_nop 1", f"v_permlane32_swap_b32 {vQn}, {vT0}", "s_waitcnt lgkmcnt(0)", f"v_add_f32 {vQn}, {vQn}, {vT0}",
      f"v_mul_f32 {vQn}, {vQn}, {vM}", f"s_mov_b32 {sT1}, {THR2 if not FORCE_SLOW else 0}", f"v_cmp_nge_f32 vcc, {sT1}, {vQn}"])
emit(att_prologue())
emit(ts('att_start'))
pre0 = ["s_waitcnt vmcnt(1)", "s_barrier",
        f"ds_read_b128 {vr(KB[0],4)}, {vKc}", f"ds_read_b128 {vr(KB[1],4)}, {vKc} offset:2048",
        f"s_mov_b64 exec, {sVm}", f"ds_read_b128 {vr(VB[0],4)}, {vKc} offset:1024", f"ds_read_b128 {vr(VB[0]+4,4)}, {vKc} offset:1280", "s_mov_b64 exec, -1",
        "s_waitcnt lgkmcnt(3)",
        f"v_mfma_f32_32x32x16_bf16 {vr(SB[0],16)}, {vr(KB[0],4)}, {vr(Q,4)}, 0", "s_nop 4"]
fc, ft = att_loops(False)
sc, st = att_loops(True)
tc, tt = tail()
code.extend(["s_cbranch_vccnz L_slow"] + pre0 + fc + ["L_tail:"] + tc)
endc = []
if DEBUG_TS:
    endc += ["s_waitcnt vmcnt(0)"] + ts('end')
    endc += [f"s_lshl_b32 {sT1}, s2, 3", f"s_add_u32 {sT1}, {sT1}, {sW}", f"s_lshl_b32 {sT1}, {sT1}, 7", f"s_add_u32 {sT1}, {sT1}, {WS_TS}",
             "s_memrealtime s[94:95]", "s_waitcnt lgkmcnt(0)"]
    for i in range(24): endc += [f"v_mov_b32 v16, s{72+i}", f"v_mov_b32 v17, {4*i}", f"buffer_store_dword v16, v17, {rWS}, {sT1} offen"]
code.extend(endc + ["L_end:", "s_endpgm"])
code.extend(["L_slow:"] + slow_prepass() + pre0 + sc + ["s_branch L_tail"])

errs = []
for r in (0, 1):
    for nm, t in (("fast", pre0 + ft + tt), ("slow", slow_prepass() + pre0 + st + tt)):
        full = tr[r] + t
        errs += check_hazards(full, f"role{r}/{nm}") + check_waits(full, f"role{r}/{nm}")
for k in ('V', 'G'):
    errs += check_hazards(qtr[k], k) + check_waits(qtr[k], k)
for e in sorted(set(errs)): print("ERR", e, file=sys.stderr)

hdr = open('cdna_kernels/' + NAME + '.s.ref').read().split('\n')
top = [l for l in hdr if l.startswith(';') and '@launch' not in l and 'Override' not in l and 'grid=ceil' not in l]
out = top + [f"; @launch grid=(256,1,1) block=(512,1,1) lds={LDS_TOTAL}",
             '.amdgcn_target "amdgcn-amd-amdhsa--gfx950"', ".text", f".globl {NAME}_kernel", ".p2align 8", f".type {NAME}_kernel,@function", f"{NAME}_kernel:"]
for l in code:
    out.append(l if l.endswith(':') else "    " + l)
out += ['.section .rodata,"a"', ".p2align 6", f".amdhsa_kernel {NAME}_kernel",
        "  .amdhsa_next_free_vgpr 256", "  .amdhsa_next_free_sgpr 102", "  .amdhsa_accum_offset 256",
        "  .amdhsa_group_segment_fixed_size 0", "  .amdhsa_kernarg_size 104", "  .amdhsa_user_sgpr_count 2",
        "  .amdhsa_user_sgpr_kernarg_segment_ptr 1", "  .amdhsa_system_sgpr_workgroup_id_x 1", ".end_amdhsa_kernel", ""]
open(OUTFILE or ('cdna_kernels/' + NAME + '.s'), 'w').write("\n".join(out))
if DEBUG_TS: open('ts_tags.txt', 'w').write("\n".join(ts_tags))
print("instructions:", sum(1 for l in code if not l.endswith(':')), "errors:", len(set(errs)), file=sys.stderr)
```
